```python
import torch

def _softmax(x, axis=-1):
    return torch.softmax(x, dim=axis)
def _gelu(x):
    return torch.nn.functional.gelu(x, approximate="tanh")
def _silu(x):
    return torch.nn.functional.silu(x)
def _sigmoid(x):
    return torch.sigmoid(x)
def _layernorm(x, axis=-1, eps=1e-5):
    m = x.mean(dim=axis, keepdim=True)
    v = x.var(dim=axis, keepdim=True, unbiased=False)
    return (x - m) / torch.sqrt(v + eps)
def _scatter_add(tgt, idx, src, axis=0):
    return tgt.clone().index_add_(axis, idx, src)
def _segment_sum(src, seg, n):
    out = torch.zeros((n,) + src.shape[1:], dtype=src.dtype)
    return out.index_add_(0, seg, src)
def _pad(x, pw):
    flat = tuple(v for pair in reversed(pw) for v in pair)
    return torch.nn.functional.pad(x, flat)

kernel_name = 'interleave_layers__sliding_block__glu_gated_swiglu__prompt'

def setup_inputs():

    _w = (lambda a: (lambda t: t.to(torch.bfloat16) if t.is_floating_point() else t)(torch.as_tensor(a)))
    def _A_setup():
        B, S, D = 1, 2048, 512
        return {
            "x": _w((lambda *s: torch.randn(*s, dtype=torch.bfloat16) * 0.05)(B, S, D)),
            "wqkv": _w((lambda *s: torch.randn(*s, dtype=torch.bfloat16) * 0.05)(D, 3 * D)),
            "wo": _w((lambda *s: torch.randn(*s, dtype=torch.bfloat16) * 0.05)(D, D)),
        }
    _A_in = _A_setup()

    def _B_setup():
        B, S, D, F = 1, 2048, 512, 1376
        return {
            "x": _w((lambda *s: torch.randn(*s, dtype=torch.bfloat16) * 0.05)(B, S, D)),
            "w1": _w((lambda *s: torch.randn(*s, dtype=torch.bfloat16) * 0.8)(D, F) * (2.0 / D) ** 0.5),
            "w3": _w((lambda *s: torch.randn(*s, dtype=torch.bfloat16) * 0.8)(D, F) * (2.0 / D) ** 0.5),
            "w2": _w((lambda *s: torch.randn(*s, dtype=torch.bfloat16) * 0.8)(F, D) * (2.0 / F) ** 0.5),
        }
    _B_in = _B_setup()

    return {
        "A_x": _A_in["x"],
        "A_wqkv": _A_in["wqkv"],
        "A_wo": _A_in["wo"],
        "B_x": _B_in["x"],
        "B_w1": _B_in["w1"],
        "B_w3": _B_in["w3"],
        "B_w2": _B_in["w2"],
    }

def reference(A_x, A_wqkv, A_wo, B_x, B_w1, B_w3, B_w2):
    def _A_ref(x, wqkv, wo):
        B, S, D = x.shape
        H = 32; Dh = D // H; W = 256
        qkv = (lambda x, *d: x.permute(*d))((x @ wqkv).reshape(B, S, 3, H, Dh), 2, 0, 3, 1, 4)
        q, k, v = qkv[0], qkv[1], qkv[2]
        scores = torch.einsum("bhqd,bhkd->bhqk", q, k) * (Dh ** -0.5)
        idx = torch.arange(S)
        mask = (idx[:, None] - idx[None, :] >= 0) & (idx[:, None] - idx[None, :] < W)
        scores = torch.where(mask[None, None], scores, -1e9)
        p = _softmax(scores, axis=-1)
        o = torch.einsum("bhqk,bhkd->bhqd", p, v)
        return (lambda x, *d: x.permute(*d))(o, 0, 2, 1, 3).reshape(B, S, D) @ wo

    def _B_ref(x, w1, w3, w2):
        gate = torch.einsum("bsd,df->bsf", x, w1)
        up = torch.einsum("bsd,df->bsf", x, w3)
        h = _silu(gate) * up
        out = torch.einsum("bsf,fd->bsd", h, w2)
        return out

    x = A_x
    x = x + _A_ref(_layernorm(x, axis=-1), A_wqkv, A_wo)
    x = x + _B_ref(_layernorm(x, axis=-1), B_w1, B_w3, B_w2)
    x = x + _A_ref(_layernorm(x, axis=-1), A_wqkv, A_wo)
    x = x + _B_ref(_layernorm(x, axis=-1), B_w1, B_w3, B_w2)
    return x
```

```python
import sys
NAME = "interleave_layers__sliding_block__glu_gated_swiglu__prompt"
XF = [0x000000, 0x200000, 0x400000, 0x600000]
OF = 0x800000
HF = 0xA00000
KV = [0x1000000, 0x1400000]
STAT = [0x1800000 + i * 0x40000 for i in range(4)]
WQ = 0x1900000
WO = 0x1A80000
W13 = 0x1B00000
W2 = 0x1E00000
CQ = 0x1F80000
C13 = 0x1F90000
FLAGS = [0x1FC0000, 0x1FD0000]
WS_SIZE = 0x2000000
LOG2E = 1.4426950408889634
import struct
def f2u(x): return struct.unpack("<I", struct.pack("<f", x))[0]

class K:
    def __init__(s, name, nv, na=0, ns=102):
        s.name = name; s.L = []; s.nv = nv; s.na = na; s.ns = ns; s.lab = 0
        s(f".globl {name}\n.p2align 8\n.type {name},@function\n{name}:")
    def __call__(s, t):
        for x in t.split("\n"):
            s.L.append(x if x.endswith(":") or x.startswith(".") else "  " + x)
    def label(s, p="L"):
        s.lab += 1; return f"{p}_{s.name[:-7]}_{s.lab}"
    def nop(s, n):
        while n > 0:
            m = min(n, 16); s(f"s_nop {m-1}"); n -= m
    def text(s): return "\n".join(s.L)
    def desc(s):
        acc = (s.nv + 3) // 4 * 4
        return f""".p2align 6
.amdhsa_kernel {s.name}
  .amdhsa_next_free_vgpr {acc + s.na if s.na else s.nv}
  .amdhsa_next_free_sgpr {s.ns}
  .amdhsa_accum_offset {acc}
  .amdhsa_group_segment_fixed_size 0
  .amdhsa_kernarg_size 80
  .amdhsa_user_sgpr_count 2
  .amdhsa_user_sgpr_kernarg_segment_ptr 1
  .amdhsa_system_sgpr_workgroup_id_x 1
.end_amdhsa_kernel"""
def v(a, n=1): return f"v{a}" if n == 1 else f"v[{a}:{a+n-1}]"
def a(x, n=1): return f"a{x}" if n == 1 else f"a[{x}:{x+n-1}]"
def mfma(d, A, B, c=None): return f"v_mfma_f32_32x32x16_bf16 {d}, {A}, {B}, {d if c is None else c}"

def ws_srd(k):
    k(f"s_mov_b32 s8, s4\ns_mov_b32 s9, s5\ns_mov_b32 s10, {WS_SIZE:#x}\ns_mov_b32 s11, 0x20000")

def gen_prep():
    k = K("prep_kernel", 96)
    end = "L_prep_end"
    k("s_cmp_ge_u32 s2, 520\ns_cbranch_scc1 " + end)
    k("s_load_dwordx2 s[4:5], s[0:1], 72")
    k("s_load_dwordx4 s[16:19], s[0:1], 0")
    k("s_load_dwordx2 s[20:21], s[0:1], 16")
    k("s_load_dwordx4 s[24:27], s[0:1], 32")
    k("s_load_dwordx2 s[28:29], s[0:1], 48")
    k("v_lshlrev_b32 v1, 4, v0")
    k("v_lshrrev_b32 v2, 5, v0")
    k("v_mov_b32 v3, 0x3f803f80")
    k("s_mov_b32 s15, 0x20000")
    k("s_waitcnt lgkmcnt(0)")
    ws_srd(k)
    k("s_cmp_ge_u32 s2, 128\ns_cbranch_scc1 L_prep_w")
    k("s_mov_b32 s12, s16\ns_mov_b32 s13, s17\ns_mov_b32 s14, 0x200000")
    k("s_lshr_b32 s30, s2, 1\ns_and_b32 s31, s2, 1")
    k("s_lshl_b32 s32, s30, 15\ns_lshl_b32 s33, s31, 9\ns_add_u32 s32, s32, s33")
    k("v_and_b32 v4, 31, v0\nv_lshlrev_b32 v5, 4, v4\nv_lshlrev_b32 v6, 14, v2\nv_add_u32 v5, v5, v6")
    for j in range(16):
        k(f"s_add_u32 s34, s32, {j*1024}\ns_mov_b32 m0, {j*1040}\ns_nop 0")
        k("buffer_load_dwordx4 v5, s[12:15], s34 offen lds")
    k("v_mov_b32 v8, 0\nv_mov_b32 v9, 0\nv_mov_b32 v10, 0\nv_mov_b32 v11, 0")
    k(f"s_lshl_b32 s34, s2, 10\ns_add_u32 s34, s34, {FLAGS[0]:#x}")
    k("buffer_store_dwordx4 v[8:11], v1, s[8:11], s34 offen")
    k("v_and_b32 v6, 15, v0\nv_mul_u32_u24 v6, 1040, v6\nv_lshrrev_b32 v7, 4, v4\nv_lshlrev_b32 v7, 9, v7\nv_add_u32 v6, v6, v7\nv_lshlrev_b32 v7, 3, v2\nv_add_u32 v6, v6, v7")
    k(f"s_lshl_b32 s35, s30, 15\ns_lshl_b32 s36, s31, 14\ns_add_u32 s35, s35, s36\ns_add_u32 s35, s35, {XF[0]:#x}")
    k(f"s_lshl_b32 s37, s30, 12\ns_lshl_b32 s36, s31, 11\ns_add_u32 s37, s37, s36\ns_add_u32 s37, s37, {STAT[0]:#x}")
    k("v_lshlrev_b32 v7, 2, v0")
    k("s_waitcnt vmcnt(0)")
    for s in range(16):
        k(f"ds_read2_b64 {v(16+4*s,4)}, v6 offset0:{4*s} offset1:{4*s+2}")
    for g in range(8):
        k(f"s_waitcnt lgkmcnt({14-2*g})")
        for s in (2*g, 2*g+1):
            if s % 4 == 0 and s: k("s_add_u32 s35, s35, 4096")
            k(f"buffer_store_dwordx4 {v(16+4*s,4)}, v1, s[8:11], s35 offen offset:{(s%4)*1024}")
        sa, sq = 80 + 2*(g % 2)*2, 81 + 2*(g % 2)*2
        k(f"v_mov_b32 v{sa}, 0\nv_mov_b32 v{sq}, 0")
        for r in range(8):
            k(f"v_dot2c_f32_bf16 v{sa}, v{16+8*g+r}, v3\nv_dot2c_f32_bf16 v{sq}, v{16+8*g+r}, v{16+8*g+r}")
        k.nop(4)
        k(f"v_permlane32_swap_b32 v{sa}, v{sq}\ns_nop 1\nv_add_f32 v{sa+2}, v{sa}, v{sq}" .replace(f"v{sa+2},", f"v{88+g},"))
        k(f"buffer_store_dword v{88+g}, v7, s[8:11], s37 offen offset:{g*256}")
    k("s_endpgm")
    k("L_prep_w:")
    k("v_mov_b32 v10, v1\nv_mov_b32 v11, v1")
    def setup(lo, src, nbytes, stride, dst, PS, corr, mode, w2=False):
        k(f"s_sub_u32 s30, s2, {lo}")
        if w2: k("s_and_b32 s32, s30, 7\ns_lshr_b32 s31, s30, 3")
        else:  k("s_and_b32 s31, s30, 3\ns_lshr_b32 s32, s30, 2")
        k(f"s_mov_b32 s12, s{src}\ns_mov_b32 s13, s{src+1}\ns_mov_b32 s14, {nbytes}\ns_mov_b32 s33, {stride}")
        gstep, pstep = (2*PS, PS) if mode == 0 else (4*PS, 2*PS)
        k(f"s_mul_i32 s35, s32, {gstep}\ns_lshl_b32 s36, s31, 13\ns_add_u32 s35, s35, s36\ns_add_u32 s35, s35, {dst:#x}\ns_mov_b32 s38, {pstep}")
        if corr:
            cg, cp = (2048, 1024) if mode == 0 else (4096, 2048)
            k(f"s_mul_i32 s39, s32, {cg}\ns_lshr_b32 s36, s31, 1\ns_lshl_b32 s36, s36, 3\ns_add_u32 s39, s39, s36\ns_add_u32 s39, s39, {corr:#x}\ns_mov_b32 s40, {cp}")
        else:
            k("s_mov_b32 s39, 0\ns_mov_b32 s40, 0")
        if mode:
            up = 16 if mode == 2 else 0
            k(f"v_and_b32 v4, 15, v0\nv_lshl_add_u32 v4, v2, 5, v4\nv_add_u32 v4, {up}, v4\nv_lshlrev_b32 v4, 4, v4")
            k("v_bfe_u32 v5, v0, 4, 1\nv_lshl_add_u32 v10, v5, 15, v4\nv_lshl_add_u32 v11, v5, 10, v4")
        k("s_branch L_prep_wgo")
    k("s_cmp_ge_u32 s2, 224\ns_cbranch_scc1 L_prep_w1")
    setup(128, 18, 512*1536*2, 3072, WQ, 32768, CQ, 0)
    k("L_prep_w1:\ns_cmp_ge_u32 s2, 312\ns_cbranch_scc1 L_prep_w3")
    setup(224, 24, 512*1376*2, 2752, W13, 32768, C13, 1)
    k("L_prep_w3:\ns_cmp_ge_u32 s2, 400\ns_cbranch_scc1 L_prep_wo")
    setup(312, 26, 512*1376*2, 2752, W13, 32768, C13, 2)
    k("L_prep_wo:\ns_cmp_ge_u32 s2, 432\ns_cbranch_scc1 L_prep_w2")
    setup(400, 20, 512*512*2, 1024, WO, 32768, 0, 0)
    k("L_prep_w2:")
    setup(432, 28, 1376*512*2, 1024, W2, 88*1024, 0, 0, True)
    k("L_prep_wgo:")
    k("v_lshrrev_b32 v4, 3, v0\nv_mul_lo_u32 v4, v4, s33\nv_and_b32 v5, 7, v0\nv_lshl_add_u32 v4, v5, 4, v4")
    k("s_lshl_b32 s34, s31, 7\ns_mul_i32 s34, s34, s33\ns_lshl_b32 s36, s32, 7\ns_add_u32 s34, s34, s36\ns_lshl_b32 s36, s33, 3")
    for i in range(16):
        k(f"s_mov_b32 m0, {i*1024}\ns_nop 0")
        k("buffer_load_dwordx4 v4, s[12:15], s34 offen lds")
        k("s_add_u32 s34, s34, s36")
    k("v_bfe_u32 v5, v0, 2, 2\nv_lshl_add_u32 v5, v2, 2, v5\nv_lshlrev_b32 v5, 7, v5\nv_bfe_u32 v6, v0, 4, 1\nv_lshl_add_u32 v5, v6, 5, v5\nv_and_b32 v6, 3, v0\nv_lshl_add_u32 v5, v6, 3, v5")
    k("s_waitcnt vmcnt(0)")
    for pp in range(2):
        for s in range(8):
            for u in range(2):
                k(f"ds_read_b64_tr_b16 {v(16+32*pp+4*s+2*u,2)}, v5 offset:{(16*s+8*u)*128+pp*64}")
        k("s_waitcnt lgkmcnt(0)")
        k("s_mov_b32 s41, s35")
        for s in range(8):
            if s == 4: k("s_add_u32 s41, s41, 4096")
            k(f"buffer_store_dwordx4 {v(16+32*pp+4*s,4)}, v10, s[8:11], s41 offen offset:{(s%4)*1024}")
        k("s_add_u32 s35, s35, s38")
    k("s_cmp_eq_u32 s39, 0\ns_cbranch_scc1 " + end)
    k("s_and_b32 s36, s31, 1\nv_cmp_eq_u32 vcc, s36, v2")
    for pp in range(2):
        k("v_mov_b32 v80, 0\nv_mov_b32 v81, 0")
        for r in range(0, 32, 2):
            k(f"v_dot2c_f32_bf16 v80, v{16+32*pp+r}, v3\nv_dot2c_f32_bf16 v81, v{17+32*pp+r}, v3")
        k.nop(4)
        k("v_add_f32 v80, v80, v81\nv_mov_b32 v81, v80\ns_nop 1\nv_permlane32_swap_b32 v80, v81\ns_nop 1\nv_add_f32 v80, v80, v81")
        d = 84 + 2*pp
        k(f"v_cvt_pk_bf16_f32 v{d}, v80, v80\nv_and_b32 v82, 0xffff0000, v{d}\nv_sub_f32 v82, v80, v82\nv_cvt_pk_bf16_f32 v{d+1}, v82, v82")
    k("s_and_saveexec_b64 s[42:43], vcc")
    k("buffer_store_dwordx2 v[84:85], v11, s[8:11], s39 offen")
    k("s_add_u32 s39, s39, s40")
    k("buffer_store_dwordx2 v[86:87], v11, s[8:11], s39 offen")
    k(end + ":\ns_endpgm")
    return k, "grid=(520,1,1) block=(64,1,1) lds=16640"

def stats_load(k, st, vL4, sOff):
    for g in range(16):
        k(f"buffer_load_dword v{st+g}, v{vL4}, s[8:11], s{sOff} offen offset:{g*256}")
def stats_calc(k, st, vR, vM, vV):
    for w in (8, 4, 2, 1):
        for i in range(w): k(f"v_add_f32 v{st+i}, v{st+i}, v{st+i+w}")
    k(f"v_mov_b32 v{st+1}, v{st}\ns_nop 1\nv_permlane32_swap_b32 v{st}, v{st+1}\ns_nop 1")
    k(f"v_mul_f32 v{st}, {f2u(-1.0/512):#x}, v{st}")
    k(f"v_mul_f32 v{st+1}, {f2u(1.0/512):#x}, v{st+1}")
    k(f"v_fma_f32 v{st+1}, -v{st}, v{st}, v{st+1}")
    k(f"v_max_f32 v{st+1}, 0, v{st+1}")
    k(f"v_add_f32 v{vV}, {f2u(1e-5):#x}, v{st+1}")
    k(f"v_rsq_f32 v{vR}, v{vV}")
    k(f"v_cvt_pk_bf16_f32 v{st+2}, v{st}, v{st}\nv_and_b32 v{st+2}, 0xffff0000, v{st+2}\nv_sub_f32 v{st+3}, v{st}, v{st+2}")
    k(f"v_cvt_pk_bf16_f32 v{vM}, v{st+2}, v{st+3}")
    k(f"v_mov_b32 v{vM+1}, v{vM}\nv_mov_b32 v{vM+2}, v{vM}\nv_mov_b32 v{vM+3}, v{vM}")

def prologue(k, nwg, end):
    k(f"s_cmp_ge_u32 s2, {nwg}\ns_cbranch_scc1 {end}")
    k("s_load_dwordx2 s[4:5], s[0:1], 72")
    k("v_lshrrev_b32 v1, 6, v0\nv_and_b32 v0, 63, v0")
    k("v_readfirstlane_b32 s3, v1")
    k("v_lshlrev_b32 v1, 4, v0\nv_lshlrev_b32 v2, 2, v0")

def gen_k1(layer):
    k = K(f"qkv{layer}_kernel", 256)
    end = k.label("Lend"); ldr = k.label("Lldr"); att = k.label("Latt")
    xin, st = XF[2*layer], STAT[2*layer]
    KVL = 98304; QL = KVL + 49152; RL = QL + 8192
    prologue(k, 256, end)
    k("s_and_b32 s12, s2, 7\ns_lshl_b32 s12, s12, 1\ns_bfe_u32 s13, s2, 0x10003\ns_add_u32 s12, s12, s13\ns_lshr_b32 s13, s2, 4")
    k("s_and_b32 s14, s3, 3\ns_lshl_b32 s15, s12, 2\ns_add_u32 s15, s15, s14")
    k("s_waitcnt lgkmcnt(0)")
    ws_srd(k)
    k(f"s_cmp_ge_u32 s3, 4\ns_cbranch_scc1 {ldr}")
    X = 128; ACC = 16; WF = 64; CR = 88; ST = 100; vR = 116; vV = 117; vM = 120
    k(f"s_lshl_b32 s16, s15, 12\ns_add_u32 s16, s16, {st:#x}")
    stats_load(k, ST, 2, 16)
    k(f"s_lshl_b32 s17, s13, 10\ns_add_u32 s17, s17, {CQ:#x}")
    for p in range(3):
        k(f"buffer_load_dwordx4 {v(CR+4*p,4)}, v1, s[8:11], s17 offen")
        if p < 2: k("s_add_u32 s17, s17, 16384")
    k(f"s_lshl_b32 s18, s15, 15\ns_add_u32 s18, s18, {xin:#x}")
    for s in range(32):
        if s and s % 4 == 0: k("s_add_u32 s18, s18, 4096")
        k(f"buffer_load_dwordx4 {v(X+4*s,4)}, v1, s[8:11], s18 offen offset:{(s%4)*1024}")
    k("s_waitcnt vmcnt(35)")
    stats_calc(k, ST, vR, vM, vV)
    k(f"v_and_b32 v3, 31, v0\nv_lshlrev_b32 v3, 2, v3\ns_lshl_b32 s19, s14, 7\nv_add_u32 v3, s19, v3")
    k(f"ds_write_b32 v3, v{vR} offset:{RL-98304}".replace("v3,", "v3,", 1))
    k.L.pop(); k(f"v_add_u32 v3, {RL}, v3\nds_write_b32 v3, v{vR}")
    k("s_waitcnt vmcnt(32)")
    k(mfma(v(ACC,16), v(CR,4), v(vM,4), 0)); k(mfma(v(ACC+16,16), v(CR+4,4), v(vM,4), 0)); k(mfma(v(ACC+32,16), v(vM,4), v(CR+8,4), 0))
    k(f"v_add_u32 v4, 49152, v1")
    def rd(s):
        c, q = s // 4, s % 4
        for p in range(3):
            off = c*12288 + p*4096 + q*1024
            base = "v1" if off < 49152 else "v4"
            k(f"ds_read_b128 {v(WF+12*(s%2)+4*p,4)}, {base} offset:{off % 49152}")
    k("s_barrier"); rd(0)
    for s in range(32):
        if s + 1 < 32:
            if (s+1) % 4 == 0: k("s_barrier")
            rd(s+1)
            k(f"s_waitcnt vmcnt({31-s}) lgkmcnt(3)")
        else: k("s_waitcnt vmcnt(0) lgkmcnt(0)")
        w = WF + 12*(s % 2)
        k(mfma(v(ACC,16), v(w,4), v(X+4*s,4))); k(mfma(v(ACC+16,16), v(w+4,4), v(X+4*s,4))); k(mfma(v(ACC+32,16), v(X+4*s,4), v(w+8,4)))
    k(f"v_lshrrev_b32 v3, 5, v0\nv_lshlrev_b32 v3, 4, v3\nv_add_u32 v3, s19, v3\nv_add_u32 v3, {RL}, v3")
    for j in range(4): k(f"ds_read_b128 {v(ST+4*j,4)}, v3 offset:{32*j}")
    k(f"v_mul_f32 v118, {f2u(0.25*LOG2E):#x}, v{vR}")
    k.nop(8)
    P = 128
    for i in range(16): k(f"v_mul_f32 v{ACC+i}, v{ACC+i}, v118")
    for i in range(8): k(f"v_cvt_pk_bf16_f32 v{P+i}, v{ACC+2*i}, v{ACC+2*i+1}")
    for i in range(16): k(f"v_mul_f32 v{ACC+16+i}, v{ACC+16+i}, v{vR}")
    for i in range(8): k(f"v_cvt_pk_bf16_f32 v{P+8+i}, v{ACC+16+2*i}, v{ACC+16+2*i+1}")
    k("s_waitcnt lgkmcnt(0)")
    for i in range(16): k(f"v_mul_f32 v{ACC+32+i}, v{ACC+32+i}, v{ST+i}")
    for i in range(8): k(f"v_cvt_pk_bf16_f32 v{P+16+i}, v{ACC+32+2*i}, v{ACC+32+2*i+1}")
    k(f"s_lshl_b32 s20, s15, 4\ns_add_u32 s20, s20, s13\ns_lshl_b32 s21, s20, 12\ns_add_u32 s21, s21, {KV[layer]:#x}")
    for i in range(4): k(f"buffer_store_dwordx4 {v(P+8+4*i,4)}, v1, s[8:11], s21 offen offset:{i*1024} sc1")
    k(f"s_lshl_b32 s22, s14, 12\ns_add_u32 s22, s22, {KVL+8*4096}\nv_add_u32 v3, s22, v1")
    for i in range(4): k(f"ds_write_b128 v3, {v(P+8+4*i,4)} offset:{i*1024}")
    k(f"s_lshl_b32 s22, s14, 11\ns_add_u32 s22, s22, {QL}\nv_add_u32 v3, s22, v1")
    for i in range(2): k(f"ds_write_b128 v3, {v(P+4*i,4)} offset:{i*1024}")
    k(f"s_lshl_b32 s21, s20, 6\ns_add_u32 s21, s21, {FLAGS[layer]:#x}\nv_mov_b32 v5, 1\nv_mov_b32 v6, 0")
    k("s_waitcnt vmcnt(0)")
    k("s_mov_b64 exec, 1\nbuffer_store_dword v5, v6, s[8:11], s21 offen sc1\ns_mov_b64 exec, -1")
    k(f"s_branch {att}")
    k(ldr + ":")
    k(f"s_lshl_b32 s16, s13, 15\ns_lshl_b32 s17, s14, 10\ns_add_u32 s16, s16, s17\ns_add_u32 s16, s16, {WQ:#x}")
    for c in range(8):
        for p in range(3):
            k(f"s_add_u32 m0, s17, {c*12288+p*4096}\ns_add_u32 s18, s16, {p*16*32768+c*4096}")
            k("buffer_load_dwordx4 v1, s[8:11], s18 offen lds")
    for c in range(8):
        k(f"s_waitcnt vmcnt({21-3*c})\ns_barrier")
    k("v_mov_b32 v6, 0")
    for d in (1, 2):
        skip = k.label(); spin = k.label(); go = k.label()
        k(f"s_mov_b32 s21, {WS_SIZE:#x}")
        k(f"s_cmp_lt_u32 s12, {d}\ns_cbranch_scc1 {skip}")
        k(f"s_sub_u32 s20, s15, {4*d}\ns_lshl_b32 s20, s20, 4\ns_add_u32 s20, s20, s13")
        k(f"s_lshl_b32 s21, s20, 12\ns_add_u32 s21, s21, {KV[layer]:#x}")
        k(f"s_lshl_b32 s22, s20, 6\ns_add_u32 s22, s22, {FLAGS[layer]:#x}\ns_mov_b32 s23, 0")
        k(f"{spin}:\nbuffer_load_dword v5, v6, s[8:11], s22 offen sc1\ns_waitcnt vmcnt(0)")
        k(f"v_readfirstlane_b32 s24, v5\ns_cmp_lg_u32 s24, 0\ns_cbranch_scc1 {skip}")
        k(f"s_add_u32 s23, s23, 1\ns_cmp_lt_u32 s23, 0x40000\ns_cbranch_scc1 {spin}")
        k(f"{skip}:")
        for i in range(4): k(f"buffer_load_dwordx4 {v(16*d+4*i,4)}, v1, s[8:11], s21 offen offset:{i*1024} sc1")
    k(f"s_lshl_b32 s22, s14, 12\ns_add_u32 s22, s22, {KVL}\nv_add_u32 v3, s22, v1")
    k("s_waitcnt vmcnt(0)")
    for d in (1, 2):
        for i in range(4): k(f"ds_write_b128 v3, {v(16*d+4*i,4)} offset:{(2-d)*16384+i*1024}")
    k(att + ":")
    S = 16; KF = 160; Q = 196; O = 200; VF = 216; MK = 232; MX = 240
    k("s_lshr_b32 s25, s3, 2")
    k(f"s_lshl_b32 s22, s14, 12\ns_add_u32 s22, s22, {KVL}\nv_add_u32 v4, s22, v1")
    k(f"s_lshl_b32 s23, s25, 10\nv_add_u32 v3, s23, v4")
    k(f"s_lshl_b32 s22, s14, 11\ns_add_u32 s22, s22, s23\ns_add_u32 s22, s22, {QL}\nv_add_u32 v5, s22, v1")
    k("v_lshrrev_b32 v6, 5, v0\nv_lshlrev_b32 v6, 2, v6\nv_and_b32 v7, 31, v0\nv_sub_u32 v6, v6, v7")
    for i in range(16):
        kk = (i & 3) + 8*(i >> 2)
        k(f"v_cmp_lt_i32 s[{32+2*i}:{33+2*i}], {-kk}, v6" if kk <= 16 else f"v_add_u32 v7, {kk}, v6\nv_cmp_lt_i32 s[{32+2*i}:{33+2*i}], 0, v7")
    k("v_mov_b32 v8, 0xffff\nv_mov_b32 v9, 0xffff0000")
    for r in range(8):
        k(f"v_cndmask_b32 v{MK+r}, 0, v8, s[{32+4*r}:{33+4*r}]\nv_cndmask_b32 v7, 0, v9, s[{34+4*r}:{35+4*r}]\nv_or_b32 v{MK+r}, v{MK+r}, v7")
    for i in range(16): k(f"v_mov_b32 v{VF+i}, 0x3f803f80")
    k("s_lshl_b32 s26, s25, 4\ns_lshl_b32 s28, 0xffff, s26\ns_mov_b32 s29, s28")
    k("s_sub_i32 s27, 8, s15\ns_max_i32 s27, s27, 0")
    k("s_waitcnt lgkmcnt(0)\ns_barrier")
    k(f"ds_read_b128 {v(Q,4)}, v5")
    for j in range(9): k(f"ds_read_b128 {v(KF+4*j,4)}, v3 offset:{j*4096}")
    for j in range(9):
        k(f"s_waitcnt lgkmcnt({8-j})")
        k(mfma(v(S+16*j,16), v(KF+4*j,4), v(Q,4), 0))
    k.nop(12)
    dn = k.label()
    for j in range(8):
        k(f"s_cmp_le_u32 s27, {j}\ns_cbranch_scc1 {dn}")
        for i in range(16): k(f"v_mov_b32 v{S+16*j+i}, 0xff800000")
    k(dn + ":")
    for i in range(16): k(f"v_cndmask_b32 v{S+i}, v{S+128+i}, v{S+i}, s[{32+2*i}:{33+2*i}]")
    for c in range(4):
        k(f"v_max3_f32 v{MX+c}, v{S+32*c}, v{S+32*c+1}, v{S+32*c+2}")
    for i in range(3, 31, 2):
        for c in range(4): k(f"v_max3_f32 v{MX+c}, v{MX+c}, v{S+32*c+i}, v{S+32*c+i+1}")
    for c in range(4): k(f"v_max_f32 v{MX+c}, v{MX+c}, v{S+32*c+31}")
    k(f"v_max3_f32 v{MX}, v{MX}, v{MX+1}, v{MX+2}\nv_max_f32 v{MX}, v{MX}, v{MX+3}\nv_mov_b32 v{MX+1}, v{MX}\ns_nop 1")
    k(f"v_permlane32_swap_b32 v{MX}, v{MX+1}\ns_nop 1\nv_max_f32 v{MX}, v{MX}, v{MX+1}")
    order = [1, 2, 3, 4, 5, 6, 7, 0, 8]
    def vrd(n):
        j = order[n]
        k("s_mov_b64 exec, s[28:29]")
        for ks in range(2): k(f"ds_read_b128 {v(VF+8*(n%2)+4*ks,4)}, v4 offset:{j*4096+2048+ks*1024}")
        k("s_mov_b64 exec, -1")
    vrd(0)
    PB = KF
    for n, j in enumerate(order):
        pb = PB + 8*(n % 3)
        if j != 8:
            for i in range(16): k(f"v_sub_f32 v{S+16*j+i}, v{S+16*j+i}, v{MX}")
            for i in range(16): k(f"v_exp_f32 v{S+16*j+i}, v{S+16*j+i}")
            for r in range(8): k(f"v_cvt_pk_bf16_f32 v{pb+r}, v{S+16*j+2*r}, v{S+16*j+2*r+1}")
            if j == 0:
                pn = PB + 8*((n+1) % 3)
                for r in range(8): k(f"v_bfi_b32 v{pn+r}, v{MK+r}, 0, v{pb+r}")
                for r in range(8): k(f"v_and_b32 v{pb+r}, v{MK+r}, v{pb+r}")
        if n + 1 < 9:
            vrd(n+1); k("s_waitcnt lgkmcnt(2)")
        else: k("s_waitcnt lgkmcnt(0)")
        k("s_nop 0")
        for ks in range(2):
            k(mfma(v(O,16), v(VF+8*(n%2)+4*ks,4), v(pb+4*ks,4), 0 if (n == 0 and ks == 0) else None))
    k.nop(12)
    hb = k.label(); fin = k.label()
    k(f"s_cmp_lg_u32 s25, 0\ns_cbranch_scc1 {hb}")
    k(f"v_rcp_f32 v7, v{O+8}\ns_nop 0")
    for i in range(8): k(f"v_mul_f32 v{S+i}, v{O+i}, v7")
    k(f"s_branch {fin}\n{hb}:\nv_rcp_f32 v7, v{O}\ns_nop 0")
    for i in range(8): k(f"v_mul_f32 v{S+i}, v{O+8+i}, v7")
    k(fin + ":")
    for r in range(4): k(f"v_cvt_pk_bf16_f32 v{S+8+r}, v{S+2*r}, v{S+2*r+1}")
    k(f"s_lshl_b32 s20, s15, 5\ns_lshl_b32 s21, s13, 1\ns_add_u32 s20, s20, s21\ns_add_u32 s20, s20, s25\ns_lshl_b32 s20, s20, 10\ns_add_u32 s20, s20, {OF:#x}")
    k(f"buffer_store_dwordx4 {v(S+8,4)}, v1, s[8:11], s20 offen")
    k(end + ":\ns_endpgm")
    return k, f"grid=(256,1,1) block=(512,1,1) lds={RL+512}"

def gen_k24(name, act, ksa, wb, ksw, nst, res, xo, sto, final):
    RING = min(nst, 14)
    k = K(name, 128, na=16*RING)
    end = k.label("Lend")
    prologue(k, 256, end)
    if final: k("s_load_dwordx2 s[6:7], s[0:1], 56")
    k("s_and_b32 s12, s2, 7\ns_lshl_b32 s12, s12, 2\ns_bfe_u32 s13, s2, 0x20003\ns_add_u32 s12, s12, s13\ns_lshr_b32 s13, s2, 5")
    k(f"s_mul_i32 s14, s12, {2*ksa*1024}\ns_lshl_b32 s15, s3, 10\ns_add_u32 s14, s14, s15\ns_add_u32 s14, s14, {act:#x}\ns_add_u32 s16, s14, {ksa*1024}")
    k(f"s_mul_i32 s17, s13, {2*ksw*1024}\ns_add_u32 s17, s17, s15\ns_add_u32 s17, s17, {wb:#x}\ns_add_u32 s18, s17, {ksw*1024}")
    k("s_lshr_b32 s19, s3, 1\ns_lshl_b32 s20, s12, 1\ns_add_u32 s19, s19, s20\ns_and_b32 s20, s3, 1\ns_lshl_b32 s21, s13, 1\ns_add_u32 s20, s20, s21")
    k("s_lshl_b32 s21, s19, 15\ns_lshl_b32 s22, s20, 11\ns_add_u32 s21, s21, s22")
    k(f"s_add_u32 s22, s21, {res:#x}")
    k("s_waitcnt lgkmcnt(0)")
    ws_srd(k)
    ACC = 16; RS = 80
    k(f"buffer_load_dwordx4 {v(RS,4)}, v1, s[8:11], s22 offen\nbuffer_load_dwordx4 {v(RS+4,4)}, v1, s[8:11], s22 offen offset:1024")
    def ld(j):
        r = 16*(j % RING)
        if 4*j + 3 >= ksa:
            k(f"s_cmp_ge_u32 s3, {ksa-4*j}\ns_cselect_b32 s23, 2048, 0\ns_sub_u32 s14, s14, s23\ns_sub_u32 s16, s16, s23")
        for i, sr in enumerate((14, 16, 17, 18)):
            k(f"buffer_load_dwordx4 {a(r+4*i,4)}, v1, s[8:11], s{sr} offen")
        if j + 1 < nst:
            for sr in (14, 16, 17, 18): k(f"s_add_u32 s{sr}, s{sr}, 4096")
    for j in range(RING): ld(j)
    for j in range(nst):
        issued = min(nst, j + RING)
        k(f"s_waitcnt vmcnt({4*(issued-j-1)})")
        r = 16*(j % RING)
        for tt in range(2):
            for nt in range(2):
                k(mfma(v(ACC+16*(2*tt+nt),16), a(r+8+4*nt,4), a(r+4*tt,4), 0 if j == 0 else None))
        if j + RING < nst: ld(j + RING)
    k.nop(12)
    k("s_lshl_b32 s23, s3, 12\nv_add_u32 v3, s23, v1")
    for t in range(4):
        sk = k.label()
        k(f"s_cmp_eq_u32 s3, {t}\ns_cbranch_scc1 {sk}")
        for q in range(4): k(f"ds_write_b128 v3, {v(ACC+16*t+4*q,4)} offset:{t*16384+q*1024}")
        k(f"s_branch {sk}x\n{sk}:")
        if t:
            for i in range(16): k(f"v_mov_b32 v{96+i}, v{ACC+16*t+i}")
        else:
            for i in range(16): k(f"v_mov_b32 v{96+i}, v{ACC+i}")
        k(f"{sk}x:")
    R = 96
    for i in range(8):
        k(f"v_lshlrev_b32 v4, 16, v{RS+i}\nv_and_b32 v5, 0xffff0000, v{RS+i}\nv_add_f32 v{R+2*i}, v{R+2*i}, v4\nv_add_f32 v{R+2*i+1}, v{R+2*i+1}, v5")
    k("s_lshl_b32 s23, s3, 14\nv_add_u32 v3, s23, v1")
    k("s_waitcnt lgkmcnt(0)\ns_barrier")
    for d in range(1, 4):
        k(f"s_add_u32 s24, s3, {d}\ns_and_b32 s24, s24, 3\ns_lshl_b32 s24, s24, 12\nv_add_u32 v4, s24, v3")
        for q in range(4): k(f"ds_read_b128 {v(ACC+16*(d-1)+4*q,4)}, v4 offset:{q*1024}")
    for d in range(3):
        k(f"s_waitcnt lgkmcnt({8-4*d})")
        for i in range(16): k(f"v_add_f32 v{R+i}, v{R+i}, v{ACC+16*d+i}")
    for i in range(8): k(f"v_cvt_pk_bf16_f32 v{RS+i}, v{R+2*i}, v{R+2*i+1}")
    if not final:
        k(f"s_add_u32 s22, s21, {xo:#x}")
        k(f"buffer_store_dwordx4 {v(RS,4)}, v1, s[8:11], s22 offen\nbuffer_store_dwordx4 {v(RS+4,4)}, v1, s[8:11], s22 offen offset:1024")
        k(f"v_add_f32 v4, v{R}, v{R+1}\nv_mul_f32 v5, v{R}, v{R}\nv_fmac_f32 v5, v{R+1}, v{R+1}")
        for i in range(2, 16): k(f"v_add_f32 v4, v4, v{R+i}\nv_fmac_f32 v5, v{R+i}, v{R+i}")
        k("s_nop 1\nv_permlane32_swap_b32 v4, v5\ns_nop 1\nv_add_f32 v4, v4, v5")
        k(f"s_lshl_b32 s23, s19, 12\ns_lshl_b32 s24, s20, 8\ns_add_u32 s23, s23, s24\ns_add_u32 s23, s23, {sto:#x}")
        k("buffer_store_dword v4, v2, s[8:11], s23 offen")
    else:
        k("s_mov_b32 s28, s6\ns_mov_b32 s29, s7\ns_mov_b32 s30, 0x200000\ns_mov_b32 s31, 0x20000")
        k("v_and_b32 v4, 31, v0\nv_lshlrev_b32 v4, 10, v4\nv_lshrrev_b32 v5, 5, v0\nv_lshl_add_u32 v4, v5, 4, v4")
        k("s_lshl_b32 s23, s19, 15\ns_lshl_b32 s24, s20, 6\ns_add_u32 s23, s23, s24")
        for m in range(2):
            b = RS + 4*m
            k(f"v_permlane32_swap_b32 v{b}, v{b+2}\nv_permlane32_swap_b32 v{b+1}, v{b+3}")
        k("s_nop 1")
        for m in range(2):
            k(f"buffer_store_dwordx4 {v(RS+4*m,4)}, v4, s[28:31], s23 offen offset:{32*m}")
    k(end + ":\ns_endpgm")
    return k, "grid=(256,1,1) block=(256,1,1) lds=65536"

def gen_k3(layer):
    k = K(f"ffn{layer}_kernel", 256)
    end = k.label("Lend"); ldr = k.label("Lldr")
    xin, st = XF[2*layer+1], STAT[2*layer+1]
    NSL = 13
    prologue(k, 240, end)
    k("s_and_b32 s12, s2, 7\ns_lshl_b32 s12, s12, 1\ns_bfe_u32 s13, s2, 0x10003\ns_add_u32 s12, s12, s13\ns_lshr_b32 s13, s2, 4")
    k("s_and_b32 s14, s3, 3\ns_lshl_b32 s15, s12, 2\ns_add_u32 s15, s15, s14\ns_mul_i32 s19, s13, 6")
    k("s_waitcnt lgkmcnt(0)")
    ws_srd(k)
    k(f"s_cmp_ge_u32 s3, 4\ns_cbranch_scc1 {ldr}")
    X = 128; ACC = 16; WF = 64; CR = 88; ST = 112; vR = 10; vV = 11; vM = 12
    k(f"s_lshl_b32 s16, s15, 12\ns_add_u32 s16, s16, {st:#x}")
    stats_load(k, ST, 2, 16)
    k(f"s_lshl_b32 s17, s19, 10\ns_add_u32 s17, s17, {C13:#x}\ns_add_u32 s20, s17, 4096")
    for p in range(6):
        k(f"buffer_load_dwordx4 {v(CR+4*p,4)}, v1, s[8:11], s{17 if p < 4 else 20} offen offset:{(p%4)*1024}")
    k(f"s_lshl_b32 s18, s15, 15\ns_add_u32 s18, s18, {xin:#x}")
    for s in range(32):
        if s and s % 4 == 0: k("s_add_u32 s18, s18, 4096")
        k(f"buffer_load_dwordx4 {v(X+4*s,4)}, v1, s[8:11], s18 offen offset:{(s%4)*1024}")
    k("s_waitcnt vmcnt(38)")
    stats_calc(k, ST, vR, vM, vV)
    k(f"v_mul_f32 v9, {f2u(-LOG2E):#x}, v{vR}")
    k("v_add_u32 v4, 61440, v1\nv_add_u32 v5, 122880, v1")
    k(f"s_mul_i32 s21, s15, {86*1024}\ns_lshl_b32 s22, s19, 10\ns_add_u32 s21, s21, s22\ns_add_u32 s21, s21, {HF:#x}")
    k("s_waitcnt vmcnt(32)")
    def rd(n):
        c, q = n // 4, n % 4
        for p in range(3):
            off = (c % NSL)*12288 + p*4096 + q*1024
            k(f"ds_read_b128 {v(WF+12*(n%2)+4*p,4)}, v{(1,4,5)[off//61440]} offset:{off % 61440}")
    k("s_barrier"); rd(0)
    for g in range(2):
        for p in range(3): k(mfma(v(ACC+16*p,16), v(CR+12*g+4*p,4), v(vM,4), 0))
        for s in range(32):
            n = 32*g + s
            if n + 1 < 64:
                if (n+1) % 4 == 0: k("s_barrier")
                rd(n+1)
                k(f"s_waitcnt vmcnt({31-s}) lgkmcnt(3)" if g == 0 else "s_waitcnt lgkmcnt(3)")
            else: k("s_waitcnt lgkmcnt(0)")
            w = WF + 12*(n % 2)
            for p in range(3): k(mfma(v(ACC+16*p,16), v(w+4*p,4), v(X+4*s,4)))
        k.nop(12)
        for p in range(3):
            b = ACC + 16*p; t = ST
            for i in range(8): k(f"v_mul_f32 v{t+i}, v{b+i}, v9")
            for i in range(8): k(f"v_exp_f32 v{t+i}, v{t+i}")
            for i in range(8): k(f"v_mul_f32 v{b+i}, v{b+i}, v{b+8+i}")
            for i in range(8): k(f"v_fma_f32 v{t+i}, v{t+i}, v{vV}, v{vV}")
            for i in range(8): k(f"v_rcp_f32 v{t+i}, v{t+i}")
            k("s_nop 0")
            for i in range(8): k(f"v_mul_f32 v{b+i}, v{b+i}, v{t+i}")
            for r in range(4): k(f"v_cvt_pk_bf16_f32 v{t+8+4*(p%2)+r}, v{b+2*r}, v{b+2*r+1}")
            sk = k.label()
            k(f"s_add_u32 s22, s19, {3*g+p}\ns_cmp_ge_u32 s22, 86\ns_cbranch_scc1 {sk}")
            k(f"buffer_store_dwordx4 {v(t+8+4*(p%2),4)}, v1, s[8:11], s21 offen offset:{p*1024}")
            k(sk + ":")
        k("s_add_u32 s21, s21, 3072")
    k("s_endpgm")
    k(ldr + ":")
    k(f"s_lshl_b32 s16, s19, 15\ns_lshl_b32 s17, s14, 10\ns_add_u32 s16, s16, s17\ns_add_u32 s16, s16, {W13:#x}")
    def dma(c):
        g, cc = c // 8, c % 8
        for p in range(3):
            k(f"s_add_u32 m0, s17, {(c%NSL)*12288+p*4096}\ns_add_u32 s18, s16, {(3*g+p)*32768+cc*4096}")
            k("buffer_load_dwordx4 v1, s[8:11], s18 offen lds")
    for c in range(NSL): dma(c)
    issued = NSL
    for c in range(16):
        k(f"s_waitcnt vmcnt({3*(issued-c-1)})\ns_barrier")
        if c >= 2 and issued < 16:
            dma(issued); issued += 1
    k(end + ":\ns_endpgm")
    return k, f"grid=(240,1,1) block=(512,1,1) lds={NSL*12288}"

def main():
    ks = [gen_prep()]
    for l in range(2):
        ks.append(gen_k1(l))
        ks.append(gen_k24(f"wo{l}_kernel", OF, 32, WO, 32, 8, XF[2*l], XF[2*l+1], STAT[2*l+1], False))
        ks.append(gen_k3(l))
        ks.append(gen_k24(f"w2{l}_kernel", HF, 86, W2, 88, 22, XF[2*l+1], XF[(2*l+2) % 4], STAT[(2*l+2) % 4], l == 1))
    out = []
    for k, g in ks: out.append(f"; @launch kernel={k.name} {g}")
    out.append('.amdgcn_target "amdgcn-amd-amdhsa--gfx950"\n.text')
    for k, g in ks: out.append(k.text())
    out.append('.section .rodata,"a"')
    for k, g in ks: out.append(k.desc())
    open(sys.argv[1] if len(sys.argv) > 1 else f"cdna_kernels/{NAME}.s", "w").write("\n".join(out) + "\n")
main()
```
